```python
import torch

def _softmax(x, axis=-1):
    return torch.softmax(x, dim=axis)
def _gelu(x):
    return torch.nn.functional.gelu(x, approximate="tanh")
def _silu(x):
    return torch.nn.functional.silu(x)
def _sigmoid(x):
    return torch.sigmoid(x)
def _layernorm(x, axis=-1, eps=1e-5):
    m = x.mean(dim=axis, keepdim=True)
    v = x.var(dim=axis, keepdim=True, unbiased=False)
    return (x - m) / torch.sqrt(v + eps)
def _scatter_add(tgt, idx, src, axis=0):
    return tgt.clone().index_add_(axis, idx, src)
def _segment_sum(src, seg, n):
    out = torch.zeros((n,) + src.shape[1:], dtype=src.dtype)
    return out.index_add_(0, seg, src)
def _pad(x, pw):
    flat = tuple(v for pair in reversed(pw) for v in pair)
    return torch.nn.functional.pad(x, flat)

kernel_name = 'standalone__gqa_softmax__near_ridge'

def setup_inputs():

    _w = (lambda a: (lambda t: t.to(torch.bfloat16) if t.is_floating_point() else t)(torch.as_tensor(a)))
    B, Hq, Hkv, Sq, Sk, D = 8, 16, 8, 96, 1024, 256
    return {
        "q": _w((lambda *s: torch.randn(*s, dtype=torch.bfloat16) * 0.8)(B, Hq, Sq, D)),
        "k": _w((lambda *s: torch.randn(*s, dtype=torch.bfloat16) * 0.8)(B, Hkv, Sk, D)),
        "v": _w((lambda *s: torch.randn(*s, dtype=torch.bfloat16) * 0.05)(B, Hkv, Sk, D)),
    }

def reference(q, k, v):
    B, Hq, Sq, D = q.shape
    Hkv = k.shape[1]
    rep = Hq // Hkv
    k = (lambda x, n, axis: torch.repeat_interleave(x, n, dim=axis))(k, rep, axis=1)
    v = (lambda x, n, axis: torch.repeat_interleave(x, n, dim=axis))(v, rep, axis=1)
    scale = D ** -0.5
    scores = torch.einsum("bhqd,bhkd->bhqk", q, k) * scale
    p = _softmax(scores, axis=-1)
    return torch.einsum("bhqk,bhkd->bhqd", p, v)
```

```python
import re
KNAME = "standalone__gqa_softmax__near_ridge_kernel"

REG = re.compile(r"^-?(?:abs\()?([vas])(?:(\d+)|\[(\d+):(\d+)\])\)?$")
TRANS = ("v_exp_f32", "v_log_f32", "v_rcp_f32", "v_rsq_f32", "v_sqrt_f32")

def regs(op):
    op = op.strip()
    if op in ("vcc", "exec", "m0", "scc"):
        return {op}
    m = REG.match(op)
    if not m:
        return set()
    k = m.group(1)
    if m.group(2) is not None:
        return {f"{k}{m.group(2)}"}
    return {f"{k}{i}" for i in range(int(m.group(3)), int(m.group(4)) + 1)}

class Ins:
    def __init__(self, text, tag=None):
        self.text = text
        self.tag = tag or {}
        body = text.split(";")[0].strip()
        self.label = body.endswith(":")
        self.directive = body.startswith(".") or body == ""
        parts = body.split(None, 1)
        self.op = parts[0] if parts else ""
        rest = parts[1] if len(parts) > 1 else ""
        ops = [o.strip() for o in rest.split(",")] if rest else []
        if ops:
            last = ops[-1].split()
            ops[-1] = last[0] if last else ""
            self.mods = last[1:]
        else:
            self.mods = []
        self.ops = ops
        self.w, self.r = set(), set()
        self.kind = "other"
        o = self.op
        if self.label or self.directive:
            self.kind = "none"
        elif o.startswith("v_mfma"):
            self.kind = "mfma"
            self.passes = 8 if "32x32" in o else 4
            self.d, self.a, self.b, self.c = (regs(x) for x in ops[:4])
            self.w = set(self.d); self.r = self.a | self.b | self.c
        elif o.startswith("v_"):
            self.kind = "valu"
            self.w = regs(ops[0])
            src = ops[1:]
            if o.startswith(("v_add_co", "v_sub_co", "v_addc_co", "v_subb_co")):
                self.w |= regs(ops[1]); src = ops[2:]
            for x in src: self.r |= regs(x)
            if "swap" in o:
                self.w |= regs(ops[1]); self.r |= regs(ops[0])
            if o.startswith(("v_fmac", "v_pk_fmac")) or any(m.startswith(("row_", "quad_perm")) for m in self.mods):
                self.r |= regs(ops[0])
            if o.startswith("v_cmpx"): self.w.add("exec")
        elif o.startswith("ds_read") or o.startswith("ds_bpermute") or o.startswith("ds_swizzle"):
            self.kind = "ds_read"; self.w = regs(ops[0])
            for x in ops[1:]: self.r |= regs(x)
        elif o.startswith("ds_"):
            self.kind = "ds_write"
            for x in ops: self.r |= regs(x)
        elif o.startswith(("buffer_load", "global_load")):
            if "lds" in self.mods or "_lds_" in o:
                self.kind = "dma"
                for x in ops: self.r |= regs(x)
                self.r.add("m0")
            else:
                self.kind = "vload"; self.w = regs(ops[0])
                for x in ops[1:]: self.r |= regs(x)
        elif o.startswith(("buffer_store", "global_store", "buffer_atomic", "global_atomic")):
            self.kind = "vstore"
            for x in ops: self.r |= regs(x)
            if "atomic" in o and "sc0" in self.mods:
                self.w = regs(ops[0])
        elif o.startswith(("buffer_wbl2", "buffer_inv")):
            self.kind = "vcache"
        elif o == "s_waitcnt":
            self.kind = "wait"
        elif o == "s_nop":
            self.kind = "nop"
        elif o.startswith(("s_load", "s_memtime", "s_memrealtime")):
            self.kind = "smem"; self.w = regs(ops[0])
            for x in ops[1:]: self.r |= regs(x)
        elif o.startswith("s_"):
            self.kind = "salu"
            if o.startswith(("s_cmp", "s_cbranch", "s_branch", "s_barrier", "s_endpgm", "s_setprio", "s_sleep", "s_bitcmp")):
                for x in ops: self.r |= regs(x)
            else:
                self.w = regs(ops[0])
                for x in ops[1:]: self.r |= regs(x)
                if "saveexec" in o: self.w.add("exec")
    def states(self):
        if self.kind == "none": return 0
        if self.kind == "nop": return int(self.ops[0], 0) + 1
        return 1

def need(p, c):
    n = 0
    vec = lambda s: {x for x in s if x[0] in "va" and x != "vcc"}
    sca = lambda s: {x for x in s if x[0] == "s" or x == "vcc"}
    if p.kind == "valu":
        pw = vec(p.w)
        if c.kind == "mfma" and pw & c.r: n = max(n, 2)
        if c.kind == "valu":
            if ("permlane" in c.op or any(m.startswith(("row_", "quad_perm")) for m in c.mods)) and pw & c.r: n = max(n, 2)
            if c.op.startswith(("v_readfirstlane", "v_readlane")) and pw & c.r: n = max(n, 1)
            if p.op.startswith(TRANS) and not c.op.startswith(TRANS) and pw & c.r: n = max(n, 1)
            if sca(p.w) & c.r: n = max(n, 4 if c.op.startswith(("v_readlane", "v_writelane")) else 2)
            if "exec" in p.w: n = max(n, 5)
        if c.kind in ("dma", "vload", "vstore") and sca(p.w) & c.r: n = max(n, 5)
        if c.kind == "salu" and sca(p.w) & c.r: n = max(n, 2)
        if c.kind == "mfma" and "exec" in p.w: n = max(n, 4)
    if p.kind == "mfma":
        big = 8 if p.passes == 4 else 12
        if c.kind == "mfma":
            if p.d & (c.a | c.b): n = max(n, big)
            if p.d & c.c and not (p.d == c.c and p.passes == c.passes): n = max(n, big - 2)
            if p.d & c.d and not p.d & c.c: n = max(n, big - 2)
        elif c.kind in ("valu", "ds_read", "ds_write", "dma", "vload", "vstore"):
            if p.d & (c.r | c.w): n = max(n, big)
            if c.kind == "valu" and p.c & c.w: n = max(n, 3 if p.passes == 4 else 7)
    if p.kind == "salu" and "m0" in p.w and c.kind == "dma": n = max(n, 1)
    if p.kind == "vstore" and ("x4" in p.op or "x3" in p.op) and vec(p.r) & c.w: n = max(n, 2)
    return n

class Asm:
    def __init__(self):
        self.I = []
    def __call__(self, s, **tag):
        for line in s.split("\n"):
            line = line.strip()
            if line:
                self.I.append(Ins(line, tag))
    def pad(self, verbose=False):
        out, added = [], 0
        for c in self.I:
            if c.kind != "none":
                dist, short = 0, 0
                for p in reversed(out):
                    if dist >= 12: break
                    if p.kind == "none": continue
                    short = max(short, need(p, c) - dist)
                    dist += p.states()
                if short > 0:
                    out.append(Ins(f"s_nop {short-1}")); added += short
                    if verbose: print("pad", short, "before", c.text)
            out.append(c)
        self.I = out
        return added
    def check_waits(self):
        vm, lg = [], []
        filled = set()
        for n, c in enumerate(self.I):
            if c.kind == "wait":
                m = re.search(r"vmcnt\((\d+)\)", c.text)
                if m:
                    assert int(m.group(1)) <= 63
                    while len(vm) > int(m.group(1)): vm.pop(0)
                m = re.search(r"lgkmcnt\((\d+)\)", c.text)
                if m:
                    k = int(m.group(1)); assert k <= 15
                    if any(x.kind == "smem" for x in lg):
                        assert k == 0, f"counted lgkmcnt with SMEM outstanding: {n} {c.text}"
                    while len(lg) > k: lg.pop(0)
                continue
            if c.kind == "none": continue
            for q in (vm, lg):
                for p in q:
                    bad = p.w & (c.r | c.w)
                    assert not bad, f"ins {n} '{c.text}' touches {sorted(bad)} still in flight from '{p.text}'"
            if "use" in c.tag:
                assert c.tag["use"] in filled, f"ins {n} '{c.text}' reads {c.tag['use']} never filled"
                assert not any(p.tag.get("fill") == c.tag["use"] for p in vm), f"ins {n} '{c.text}' reads {c.tag['use']} before its DMA is waited"
            if "frees" in c.tag:
                assert not any(p.tag.get("use") == c.tag["frees"] for p in lg), f"ins {n} '{c.text}' overwrites {c.tag['frees']} while reads are in flight"
                later = [x for x in self.I[n+1:] if x.tag.get("use") == c.tag["frees"]]
                assert not later, f"ins {n} '{c.text}' overwrites {c.tag['frees']} that is read later"
            if "fill" in c.tag: filled.add(c.tag["fill"])
            if c.kind in ("dma", "vload", "vstore", "vcache"):
                vm.append(c); assert len(vm) <= 63, f"vmcnt overflow at {n}"
            if c.kind in ("ds_read", "ds_write", "smem"):
                lg.append(c)
    def text(self):
        return "\n".join(i.text if (i.label or i.directive or i.text.startswith(";")) else "    " + i.text for i in self.I) + "\n"

def header(A, grid=256, block=256, lds=163840, name=KNAME, comments=()):
    for c in comments: A.I.append(Ins("; " + c))
    A.I.append(Ins(f"; @launch grid=({grid},1,1) block=({block},1,1) lds={lds}"))
    A('.amdgcn_target "amdgcn-amd-amdhsa--gfx950"')
    A(".text"); A(f".globl {name}"); A(".p2align 8"); A(f".type {name},@function"); A(f"{name}:")

def footer(A, vgpr=512, accum=256, name=KNAME, sgpr=102):
    A('.section .rodata,"a"'); A(".p2align 6"); A(f".amdhsa_kernel {name}")
    A(f".amdhsa_next_free_vgpr {vgpr}"); A(f".amdhsa_next_free_sgpr {sgpr}"); A(f".amdhsa_accum_offset {accum}")
    A(".amdhsa_group_segment_fixed_size 0"); A(".amdhsa_kernarg_size 48"); A(".amdhsa_user_sgpr_count 2")
    A(".amdhsa_user_sgpr_kernarg_segment_ptr 1"); A(".amdhsa_system_sgpr_workgroup_id_x 1"); A(".end_amdhsa_kernel")

def srd(A, base, lo, nbytes):
    A(f"s_mov_b32 s{base}, s{lo}"); A(f"s_mov_b32 s{base+1}, s{lo+1}")
    A(f"s_mov_b32 s{base+2}, {nbytes:#x}"); A(f"s_mov_b32 s{base+3}, 0x20000")

def store_stamps(A, srdbase, stamps, vtid, vtmp, wg="s2"):
    A("s_waitcnt lgkmcnt(0)")
    A(f"s_lshl_b32 s99, {wg}, 8"); A(f"v_mov_b32 v{vtmp+2}, s99")
    A(f"v_cmp_eq_u32 vcc, 0, v{vtid}"); A("s_and_saveexec_b64 s[100:101], vcc"); A("s_cbranch_execz L_stamp_done")
    for i, s in enumerate(stamps):
        A(f"v_mov_b32 v{vtmp}, s{s}"); A(f"v_mov_b32 v{vtmp+1}, s{s+1}")
        A(f"buffer_store_dwordx2 v[{vtmp}:{vtmp+1}], v{vtmp+2}, s[{srdbase}:{srdbase+3}], 0 offen offset:{8*i}")
        A("s_nop 1")
    A("L_stamp_done:"); A("s_mov_b64 exec, s[100:101]")

def weave(main, fill, per=2, start=0):
    out, f = [], list(fill)
    for i, m in enumerate(main):
        out.append(m)
        if i >= start:
            for _ in range(per):
                if f: out.append(f.pop(0))
    return out + f
```

```python
import sys, math, struct
from asmlib import *

def f32hex(x):
    return "0x%08x" % struct.unpack("<I", struct.pack("<f", x))[0]

RING, SLOT, NS = 40960, 8192, 5
SB = 64
def S(T, t): return SB + ((T >> 1) * 3 + t) * 8 + (T & 1) * 4
def P(u, t): return SB + (u * 3 + t) * 8
def Q(t, s): return (t * 8 + s) * 4
def KF(T, s): return 96 + (T & 1) * 32 + s * 4
def VF(n, b): return 192 + (n & 1) * 32 + b * 4
def O(gi, k, t): return (gi * 12 + k * 3 + t) * 4
VM, VKR, VKD, VVD, VVR, VONE, VL, VT = 1, 4, 8, 16, 20, 28, 32, 44
sQ, sK, sV, sO, sW = 12, 16, 20, 24, 28
sWAVE, sRING, sKOFF, sVA, sVB, sSO, sC, sTMP = 32, 33, 34, 35, 36, 37, 38, 39

def gen(stamps=False, flags="", interleave=True):
    A = Asm()
    header(A, comments=["GQA attention: B=8 Hq=16 Hkv=8 Sq=96 Sk=1024 D=256, bf16 in / bf16 out."])
    st = []
    def stamp():
        if stamps:
            r = 60 + 2 * len(st); st.append(r); A(f"s_memrealtime s[{r}:{r+1}]")
    A("s_cmp_ge_u32 s2, 256"); A("s_cbranch_scc1 L_end")
    stamp()
    A("s_load_dwordx8 s[4:11], s[0:1], 0")
    if stamps: A("s_load_dwordx2 s[42:43], s[0:1], 40")
    A("v_lshrrev_b32 v1, 6, v0"); A(f"v_readfirstlane_b32 s{sWAVE}, v1")
    A("v_and_b32 v2, 63, v0")
    A("v_lshrrev_b32 v3, 5, v2"); A("v_and_b32 v44, 31, v2"); A("v_xor_b32 v44, v44, v3")
    A("v_lshlrev_b32 v44, 4, v44"); A(f"v_lshl_add_u32 v{VKD}, v3, 9, v44")
    for i in range(1, 8):
        A(f"v_xor_b32 v{VKD+i}, {i*32}, v{VKD}")
    for i in range(4, 8):
        A(f"v_add_u32 v{VKD+i}, 4096, v{VKD+i}")
    A("s_and_b32 s40, s2, 7"); A("s_lshl_b32 s40, s40, 3"); A("s_lshr_b32 s41, s2, 5"); A("s_add_u32 s40, s40, s41")
    A("s_lshr_b32 s41, s2, 3"); A("s_and_b32 s41, s41, 3")
    A(f"s_mul_i32 s{sRING}, s{sWAVE}, {RING}")
    A(f"s_lshl_b32 s{sKOFF}, s40, 19"); A(f"s_lshl_b32 s{sTMP}, s{sWAVE}, 17"); A(f"s_add_u32 s{sKOFF}, s{sKOFF}, s{sTMP}")
    A("s_mul_i32 s44, s40, 192"); A("s_mul_i32 s45, s41, 48"); A("s_add_u32 s44, s44, s45"); A("s_lshl_b32 s44, s44, 9")
    A("s_waitcnt lgkmcnt(0)")
    srd(A, sQ, 4, 6291456); srd(A, sK, 6, 33554432)
    A(f"s_cmp_ge_u32 s{sWAVE}, 3"); A("s_cbranch_scc1 L_noq")
    A(f"s_lshl_b32 s45, s{sWAVE}, 13"); A("s_add_u32 s45, s45, s44")
    for i in range(8):
        if i % 4 == 0: A(f"s_add_u32 m0, s{sRING}, {4*SLOT + (i//4)*4096}")
        A(f"buffer_load_dwordx4 v{VKD+i}, s[{sQ}:{sQ+3}], s45 offen offset:{(i%4)*1024} lds", fill="Q")
    A("L_noq:")

    def dma(n):
        slot = n % NS; L = []
        tag = dict(fill=n)
        if n >= NS: tag["frees"] = n - NS
        if n == 4: tag["frees"] = "Q"
        if n < 16:
            L.append((f"s_add_u32 s{sSO}, s{sKOFF}, {n*8192}", {}))
            for i in range(8):
                if i % 4 == 0: L.append((f"s_add_u32 m0, s{sRING}, {slot*SLOT + (i//4)*4096}", {}))
                L.append((f"buffer_load_dwordx4 v{VKD+i}, s[{sK}:{sK+3}], s{sSO} offen offset:{(i%4)*1024} {flags} lds", tag))
        else:
            u, hh = (n - 16) >> 1, (n - 16) & 1
            for i in range(8):
                if i % 4 == 0:
                    L.append((f"s_add_u32 s{sSO}, s{sVB if hh else sVA}, {u*16384 + (i//4)*8192}", {}))
                    L.append((f"s_add_u32 m0, s{sRING}, {slot*SLOT + (i//4)*4096}", {}))
                L.append((f"buffer_load_dwordx4 v{VVD+i%4}, s[{sV}:{sV+3}], s{sSO} offen offset:{(i%4)*1024} {flags} lds", tag))
        return L
    def emit(L):
        for x in L:
            if isinstance(x, tuple): A(x[0], **x[1])
            else: A(x)
    for n in range(4): emit(dma(n))

    srd(A, sV, 8, 33554432); srd(A, sO, 10, 6291456)
    if stamps: srd(A, sW, 42, 0x10000000)
    A(f"s_lshr_b32 s45, s{sWAVE}, 1"); A("s_lshl_b32 s45, s45, 8")
    A(f"s_add_u32 s{sVA}, s{sKOFF}, s45"); A(f"s_xor_b32 s{sVB}, s{sVA}, 256")
    A(f"s_mov_b32 s{sC}, {f32hex(math.log2(math.e) / 16)}")
    A("v_and_b32 v44, 15, v2"); A("v_lshrrev_b32 v45, 4, v2")
    A("v_xor_b32 v46, v45, v44"); A("v_lshlrev_b32 v46, 4, v46"); A(f"v_lshl_add_u32 v{VKR}, v44, 9, v46")
    for s in range(1, 4): A(f"v_xor_b32 v{VKR+s}, {s*64}, v{VKR}")
    A("v_lshlrev_b32 v46, 1, v45"); A("v_xor_b32 v46, v46, v44"); A("v_lshlrev_b32 v46, 4, v46")
    A(f"v_lshl_add_u32 v{VVD}, v45, 9, v46")
    A(f"v_xor_b32 v{VVD+1}, 128, v{VVD}"); A(f"v_add_u32 v{VVD+2}, 2048, v{VVD}"); A(f"v_add_u32 v{VVD+3}, 3072, v{VVD+1}")
    A(f"v_add_u32 v{VVD+1}, 1024, v{VVD+1}")
    A("v_lshrrev_b32 v46, 2, v2"); A("v_and_b32 v47, 7, v46"); A("v_lshlrev_b32 v47, 5, v47")
    A("v_lshl_add_u32 v47, v46, 8, v47"); A("v_and_b32 v48, 3, v2"); A("v_lshl_add_u32 v47, v48, 3, v47")
    A(f"s_and_b32 s45, s{sWAVE}, 1"); A("s_lshl_b32 s45, s45, 7"); A("v_xor_b32 v47, s45, v47")
    for b in range(8):
        A(f"v_xor_b32 v{VVR+b}, {b*32}, v47"); A(f"v_add_u32 v{VVR+b}, s{sRING}, v{VVR+b}")
    for r in range(4): A(f"v_mov_b32 v{VONE+r}, 0x3f803f80")
    for s in range(4): A(f"v_add_u32 v{VT+4+s}, {RING}, v{VKR+s}")
    for s in range(4): A(f"v_add_u32 v{VT+8+s}, {2*RING}, v{VKR+s}")
    A("s_waitcnt vmcnt(32)"); A("s_barrier")
    stamp()
    for t in range(3):
        for s in range(8):
            base = VKR if t == 0 else VT + 4 * t
            A(f"ds_read_b128 a[{Q(t,s)}:{Q(t,s)+3}], v{base + (s&3)} offset:{4*SLOT + (s>>2)*256}", use="Q")
        if t == 1: A("s_waitcnt lgkmcnt(8)" if not stamps else "s_waitcnt lgkmcnt(0)")
    for s in range(4): A(f"v_add_u32 v{VKR+s}, s{sRING}, v{VKR+s}")

    def reads(n):
        slot = n % NS
        if n < 16:
            return [(f"ds_read_b128 a[{KF(n,s)}:{KF(n,s)+3}], v{VKR+(s&3)} offset:{slot*SLOT + (s>>2)*256}", dict(use=n)) for s in range(8)]
        L = []
        for b in range(8):
            for h in range(2):
                r = VF(n, b) + 2 * h
                L.append((f"ds_read_b64_tr_b16 a[{r}:{r+1}], v{VVR+b} offset:{slot*SLOT + h*4096}", dict(use=n)))
        return L
    def mfmas(n):
        L = []
        if n < 16:
            for s in range(8):
                for t in range(3):
                    d = S(n, t); c = f"v[{d}:{d+3}]" if s else "0"
                    L.append(f"v_mfma_f32_16x16x32_bf16 v[{d}:{d+3}], a[{KF(n,s)}:{KF(n,s)+3}], a[{Q(t,s)}:{Q(t,s)+3}], {c}")
        else:
            u, hh = (n - 16) >> 1, (n - 16) & 1
            for b in range(8):
                for t in range(3):
                    d = O(hh * 2 + (b >> 2), b & 3, t); c = f"a[{d}:{d+3}]" if u else "0"
                    L.append(f"v_mfma_f32_16x16x32_bf16 a[{d}:{d+3}], a[{VF(n,b)}:{VF(n,b)+3}], v[{P(u,t)}:{P(u,t)+3}], {c}")
            if hh == 1:
                for t in range(3):
                    d = VL + 4 * t; c = f"v[{d}:{d+3}]" if u else "0"
                    L.append(f"v_mfma_f32_16x16x32_bf16 v[{d}:{d+3}], v[{VONE}:{VONE+3}], v[{P(u,t)}:{P(u,t)+3}], {c}")
        return L
    def maxes(T):
        L = []
        for t in range(3):
            b = S(T, t)
            if T == 0:
                L.append(f"v_max3_f32 v{VM+t}, v{b}, v{b+1}, v{b+2}")
            else:
                L.append(f"v_max3_f32 v{VM+t}, v{VM+t}, v{b}, v{b+1}")
        for t in range(3):
            b = S(T, t)
            if T == 0:
                L.append(f"v_max_f32 v{VM+t}, v{VM+t}, v{b+3}")
            else:
                L.append(f"v_max3_f32 v{VM+t}, v{VM+t}, v{b+2}, v{b+3}")
        return L
    def soft(u):
        L = []
        for t in range(3):
            b = P(u, t)
            for j in range(0, 8, 2):
                L.append(f"v_fma_f32 v{b+j}, v{b+j}, s{sC}, -v{VM+t}")
                L.append(f"v_fma_f32 v{b+j+1}, v{b+j+1}, s{sC}, -v{VM+t}")
                L.append(f"v_exp_f32 v{b+j}, v{b+j}")
                L.append(f"v_exp_f32 v{b+j+1}, v{b+j+1}")
                if j: L.append(f"v_cvt_pk_bf16_f32 v{b+j//2-1}, v{b+j-2}, v{b+j-1}")
            L.append(("cvt", b))
        out = []
        pend = None
        for x in L:
            if isinstance(x, tuple):
                pend = f"v_cvt_pk_bf16_f32 v{x[1]+3}, v{x[1]+6}, v{x[1]+7}"
                continue
            out.append(x)
            if pend and len(out) and x.startswith("v_fma"):
                out.append(pend); pend = None
        if pend: out.append(pend)
        return out

    A("s_waitcnt vmcnt(24)")
    emit(reads(0))
    A("s_waitcnt lgkmcnt(8)" if not stamps else "s_waitcnt lgkmcnt(0)"); A("s_barrier")
    emit(dma(4))
    for n in range(32):
        A("s_waitcnt lgkmcnt(0)")
        M = mfmas(n)
        fill1 = dma(n + NS) if n + NS < 32 else []
        extra = []
        if 1 <= n < 16: extra = maxes(n - 1)
        if n >= 16 and interleave:
            u, hh = (n - 16) >> 1, (n - 16) & 1
            if u < 7:
                sf = soft(u + 1); half = len(sf) // 2
                extra = sf[:half] if hh == 0 else sf[half:]
        nrd = 8 if n + 1 < 16 else 16
        tail_m = 8 if n + 1 < 16 else 10
        head, tail = M[:-tail_m], M[-tail_m:]
        ne = len(extra) * len(head) // len(M)
        emit(weave(head, fill1 + extra[:ne], per=2 if n < 16 or not interleave else 3))
        if n + 1 < 32:
            issued = min(n + NS, 31)
            A(f"s_waitcnt vmcnt({8 * (issued - (n + 1))})")
            rd = reads(n + 1)
            ex = extra[ne:]
            mix = []
            while rd or ex:
                if rd: mix.append(rd.pop(0))
                if rd and nrd == 16: mix.append(rd.pop(0))
                if ex: mix.append(ex.pop(0))
            emit(weave(tail, mix, per=2 if n < 15 else 3))
        else:
            emit(tail)
        if n == 15:
            stamp()
            emit(maxes(15))
            for swap in ("v_permlane32_swap_b32", "v_permlane16_swap_b32"):
                for t in range(3): A(f"v_mov_b32 v{VT+t}, v{VM+t}")
                for t in range(3): A(f"{swap} v{VM+t}, v{VT+t}")
                for t in range(3): A(f"v_max_f32 v{VM+t}, v{VM+t}, v{VT+t}")
            for t in range(3): A(f"v_mul_f32 v{VM+t}, s{sC}, v{VM+t}")
            for u in range(1 if interleave else 8): emit(soft(u))
    stamp()
    A("v_and_b32 v50, 63, v0"); A("v_lshlrev_b32 v4, 4, v50"); A(f"v_add_u32 v5, s{sRING}, v4")
    A("v_and_b32 v6, 15, v50"); A("v_lshlrev_b32 v7, 3, v6"); A(f"v_add_u32 v8, s{sRING}, v7")
    for gi in range(1, 4):
        for k in range(4):
            for t in range(3):
                o = O(gi, k, t)
                A(f"ds_write_b128 v5, a[{o}:{o+3}] offset:{(gi-1)*12288 + (k*3+t)*1024}")
    for t in range(3):
        A(f"v_mov_b32 v{VT+2*t}, v{VM+t}"); A(f"v_mov_b32 v{VT+2*t+1}, v{VL+4*t}")
        A(f"ds_write_b64 v8, v[{VT+2*t}:{VT+2*t+1}] offset:{36864 + t*128}")
    for gi in range(1, 4):
        A(f"s_xor_b32 s45, s{sWAVE}, {gi}"); A(f"s_mul_i32 s45, s45, {RING}")
        A(f"v_add_u32 v{8+gi}, s45, v7"); A(f"v_add_u32 v{12+gi}, s45, v4")
    OWN = 64
    for k in range(4):
        for t in range(3):
            for r in range(4):
                A(f"v_accvgpr_read_b32 v{OWN + (k*3+t)*4 + r}, a{O(0,k,t)+r}")
    A("s_waitcnt lgkmcnt(0)"); A("s_barrier")
    stamp()
    ML = 16
    for gi in range(1, 4):
        for t in range(3):
            r = ML + ((gi - 1) * 3 + t) * 2
            A(f"ds_read_b64 v[{r}:{r+1}], v{8+gi} offset:{36864 + t*128}")
    FR = 112
    def frd(gi):
        return [f"ds_read_b128 v[{FR + (gi-1)*48 + x*4}:{FR + (gi-1)*48 + x*4 + 3}], v{12+gi} offset:{(gi-1)*12288 + x*1024}" for x in range(12)]
    emit(frd(1)[:6])
    A("s_waitcnt lgkmcnt(6)" if not stamps else "s_waitcnt lgkmcnt(0)")
    F = 36
    mm = lambda gi, t: (VT + 2 * t) if gi == 0 else ML + ((gi - 1) * 3 + t) * 2
    for t in range(3): A(f"v_max3_f32 v{52+t}, v{mm(0,t)}, v{mm(1,t)}, v{mm(2,t)}")
    for t in range(3): A(f"v_max_f32 v{52+t}, v{52+t}, v{mm(3,t)}")
    for gi in range(4):
        for t in range(3): A(f"v_sub_f32 v{mm(gi,t)}, v{mm(gi,t)}, v{52+t}")
        for t in range(3): A(f"v_exp_f32 v{mm(gi,t)}, v{mm(gi,t)}")
    emit(frd(1)[6:])
    for t in range(3): A(f"v_mul_f32 v{52+t}, v{mm(0,t)}, v{mm(0,t)+1}")
    for gi in range(1, 4):
        for t in range(3): A(f"v_fma_f32 v{52+t}, v{mm(gi,t)}, v{mm(gi,t)+1}, v{52+t}")
    for t in range(3): A(f"v_rcp_f32 v{52+t}, v{52+t}")
    for gi in range(4):
        for t in range(3): A(f"v_mul_f32 v{mm(gi,t)}, v{mm(gi,t)}, v{52+t}")
    for x in range(12):
        for r in range(4): A(f"v_mul_f32 v{OWN+x*4+r}, v{OWN+x*4+r}, v{mm(0, x%3)}")
    for gi in range(1, 4):
        A("s_waitcnt lgkmcnt(0)")
        if gi < 3: emit(frd(gi + 1))
        for x in range(12):
            for r in range(4):
                A(f"v_fma_f32 v{OWN+x*4+r}, v{FR+(gi-1)*48+x*4+r}, v{mm(gi, x%3)}, v{OWN+x*4+r}")
    A("v_lshrrev_b32 v7, 4, v50"); A("v_and_b32 v9, 1, v7"); A("v_lshrrev_b32 v7, 1, v7")
    A("v_lshlrev_b32 v9, 5, v9"); A("v_lshl_add_u32 v9, v7, 4, v9"); A("v_lshl_add_u32 v9, v6, 9, v9")
    A(f"s_lshl_b32 s45, s{sWAVE}, 7"); A("s_add_u32 s44, s44, s45")
    for t in range(3):
        if t: A("s_add_u32 s44, s44, 8192")
        for kp in range(2):
            a, b = OWN + ((2*kp)*3 + t) * 4, OWN + ((2*kp+1)*3 + t) * 4
            d = FR + (t * 2 + kp) * 4
            A(f"v_cvt_pk_bf16_f32 v{d}, v{a}, v{a+1}"); A(f"v_cvt_pk_bf16_f32 v{d+1}, v{a+2}, v{a+3}")
            A(f"v_cvt_pk_bf16_f32 v{d+2}, v{b}, v{b+1}"); A(f"v_cvt_pk_bf16_f32 v{d+3}, v{b+2}, v{b+3}")
            A(f"v_permlane16_swap_b32 v{d}, v{d+2}"); A(f"v_permlane16_swap_b32 v{d+1}, v{d+3}")
            A(f"buffer_store_dwordx4 v[{d}:{d+3}], v9, s[{sO}:{sO+3}], s44 offen offset:{kp*64}")
    if stamps:
        A("s_waitcnt vmcnt(0)")
        stamp()
        store_stamps(A, sW, st, 0, 4)
    A("L_end:"); A("s_endpgm"); footer(A)
    added = A.pad(verbose="-v" in sys.argv)
    A.check_waits()
    print("instructions:", sum(1 for i in A.I if i.kind != "none"), "nop states added:", added, file=sys.stderr)
    return A.text()

if __name__ == "__main__":
    open("a_v1.s", "w").write(gen())
    open("a_v1_st.s", "w").write(gen(stamps=True))
    open("a_v1_noil.s", "w").write(gen(interleave=False))
```

```python
import sys, re
from asmlib import KNAME

def compose(files):
    heads, bodies, seen = [], [], {}
    for f in files:
        if f not in seen:
            n = len(seen); name = f"k{n}_kernel"; seen[f] = name
            t = open(f).read()
            launch = re.search(r"; @launch (.*)", t).group(1)
            t = "\n".join(l for l in t.splitlines() if not l.startswith(";") and not l.startswith(".amdgcn_target"))
            t = t.replace(KNAME, name)
            t = re.sub(r"\bL_(\w+)", rf"L{n}_\1", t)
            bodies.append(t); seen[f] = (name, launch)
        name, launch = seen[f]
        heads.append(f"; @launch kernel={name} {launch}")
    return "\n".join(heads) + '\n.amdgcn_target "amdgcn-amd-amdhsa--gfx950"\n' + "\n".join(bodies) + "\n"

if __name__ == "__main__":
    open(sys.argv[1], "w").write(compose(sys.argv[2:]))
```

```python
import re
KNAME = "standalone__gqa_softmax__near_ridge_kernel"

REG = re.compile(r"^-?(?:abs\()?([vas])(?:(\d+)|\[(\d+):(\d+)\])\)?$")
TRANS = ("v_exp_f32", "v_log_f32", "v_rcp_f32", "v_rsq_f32", "v_sqrt_f32")

def regs(op):
    op = op.strip()
    if op in ("vcc", "exec", "m0", "scc"):
        return {op}
    m = REG.match(op)
    if not m:
        return set()
    k = m.group(1)
    if m.group(2) is not None:
        return {f"{k}{m.group(2)}"}
    return {f"{k}{i}" for i in range(int(m.group(3)), int(m.group(4)) + 1)}

class Ins:
    def __init__(self, text, tag=None):
        self.text = text
        self.tag = tag or {}
        body = text.split(";")[0].strip()
        self.label = body.endswith(":")
        self.directive = body.startswith(".") or body == ""
        parts = body.split(None, 1)
        self.op = parts[0] if parts else ""
        rest = parts[1] if len(parts) > 1 else ""
        ops = [o.strip() for o in rest.split(",")] if rest else []
        if ops:
            last = ops[-1].split()
            ops[-1] = last[0] if last else ""
            self.mods = last[1:]
        else:
            self.mods = []
        self.ops = ops
        self.w, self.r = set(), set()
        self.kind = "other"
        o = self.op
        if self.label or self.directive:
            self.kind = "none"
        elif o.startswith("v_mfma"):
            self.kind = "mfma"
            self.passes = 8 if "32x32" in o else 4
            self.d, self.a, self.b, self.c = (regs(x) for x in ops[:4])
            self.w = set(self.d); self.r = self.a | self.b | self.c
        elif o.startswith("v_"):
            self.kind = "valu"
            self.w = regs(ops[0])
            src = ops[1:]
            if o.startswith(("v_add_co", "v_sub_co", "v_addc_co", "v_subb_co")):
                self.w |= regs(ops[1]); src = ops[2:]
            for x in src: self.r |= regs(x)
            if "swap" in o:
                self.w |= regs(ops[1]); self.r |= regs(ops[0])
            if o.startswith(("v_fmac", "v_pk_fmac")) or any(m.startswith(("row_", "quad_perm")) for m in self.mods):
                self.r |= regs(ops[0])
            if o.startswith("v_cmpx"): self.w.add("exec")
        elif o.startswith("ds_read") or o.startswith("ds_bpermute") or o.startswith("ds_swizzle"):
            self.kind = "ds_read"; self.w = regs(ops[0])
            for x in ops[1:]: self.r |= regs(x)
        elif o.startswith("ds_"):
            self.kind = "ds_write"
            for x in ops: self.r |= regs(x)
        elif o.startswith(("buffer_load", "global_load")):
            if "lds" in self.mods or "_lds_" in o:
                self.kind = "dma"
                for x in ops: self.r |= regs(x)
                self.r.add("m0")
            else:
                self.kind = "vload"; self.w = regs(ops[0])
                for x in ops[1:]: self.r |= regs(x)
        elif o.startswith(("buffer_store", "global_store", "buffer_atomic", "global_atomic")):
            self.kind = "vstore"
            for x in ops: self.r |= regs(x)
            if "atomic" in o and "sc0" in self.mods:
                self.w = regs(ops[0])
        elif o.startswith(("buffer_wbl2", "buffer_inv")):
            self.kind = "vcache"
        elif o == "s_waitcnt":
            self.kind = "wait"
        elif o == "s_nop":
            self.kind = "nop"
        elif o.startswith(("s_load", "s_memtime", "s_memrealtime")):
            self.kind = "smem"; self.w = regs(ops[0])
            for x in ops[1:]: self.r |= regs(x)
        elif o.startswith("s_"):
            self.kind = "salu"
            if o.startswith(("s_cmp", "s_cbranch", "s_branch", "s_barrier", "s_endpgm", "s_setprio", "s_sleep", "s_bitcmp")):
                for x in ops: self.r |= regs(x)
            else:
                self.w = regs(ops[0])
                for x in ops[1:]: self.r |= regs(x)
                if "saveexec" in o: self.w.add("exec")
    def states(self):
        if self.kind == "none": return 0
        if self.kind == "nop": return int(self.ops[0], 0) + 1
        return 1

def need(p, c):
    n = 0
    vec = lambda s: {x for x in s if x[0] in "va" and x != "vcc"}
    sca = lambda s: {x for x in s if x[0] == "s" or x == "vcc"}
    if p.kind == "valu":
        pw = vec(p.w)
        if c.kind == "mfma" and pw & c.r: n = max(n, 2)
        if c.kind == "valu":
            if ("permlane" in c.op or any(m.startswith(("row_", "quad_perm")) for m in c.mods)) and pw & c.r: n = max(n, 2)
            if c.op.startswith(("v_readfirstlane", "v_readlane")) and pw & c.r: n = max(n, 1)
            if p.op.startswith(TRANS) and not c.op.startswith(TRANS) and pw & c.r: n = max(n, 1)
            if sca(p.w) & c.r: n = max(n, 4 if c.op.startswith(("v_readlane", "v_writelane")) else 2)
            if "exec" in p.w: n = max(n, 5)
        if c.kind in ("dma", "vload", "vstore") and sca(p.w) & c.r: n = max(n, 5)
        if c.kind == "salu" and sca(p.w) & c.r: n = max(n, 2)
        if c.kind == "mfma" and "exec" in p.w: n = max(n, 4)
    if p.kind == "mfma":
        big = 8 if p.passes == 4 else 12
        if c.kind == "mfma":
            if p.d & (c.a | c.b): n = max(n, big)
            if p.d & c.c and not (p.d == c.c and p.passes == c.passes): n = max(n, big - 2)
            if p.d & c.d and not p.d & c.c: n = max(n, big - 2)
        elif c.kind in ("valu", "ds_read", "ds_write", "dma", "vload", "vstore"):
            if p.d & (c.r | c.w): n = max(n, big)
            if c.kind == "valu" and p.c & c.w: n = max(n, 3 if p.passes == 4 else 7)
    if p.kind == "salu" and "m0" in p.w and c.kind == "dma": n = max(n, 1)
    if p.kind == "vstore" and ("x4" in p.op or "x3" in p.op) and vec(p.r) & c.w: n = max(n, 2)
    return n

class Asm:
    def __init__(self):
        self.I = []
    def __call__(self, s, **tag):
        for line in s.split("\n"):
            line = line.strip()
            if line:
                self.I.append(Ins(line, tag))
    def pad(self, verbose=False):
        out, added = [], 0
        for c in self.I:
            if c.kind != "none":
                dist, short = 0, 0
                for p in reversed(out):
                    if dist >= 12: break
                    if p.kind == "none": continue
                    short = max(short, need(p, c) - dist)
                    dist += p.states()
                if short > 0:
                    out.append(Ins(f"s_nop {short-1}")); added += short
                    if verbose: print("pad", short, "before", c.text)
            out.append(c)
        self.I = out
        return added
    def guard_lgkm(self):
        out, k = [], 0
        for c in self.I:
            if not c.tag.get("side"):
                if c.kind == "wait":
                    m = re.search(r"lgkmcnt\((\d+)\)", c.text)
                    if m: k = min(k, int(m.group(1)))
                if c.kind in ("ds_read", "ds_write"):
                    if k >= 15:
                        out.append(Ins("s_waitcnt lgkmcnt(11)")); k = 11
                    k += 1
            out.append(c)
        self.I = out
    def check_waits(self):
        vm, lg = [], []
        bar = 0
        fill_ret, use_ret, filled = {}, {}, set()
        def retire(p):
            if "fill" in p.tag: fill_ret[p.tag["fill"]] = bar
            if "use" in p.tag: use_ret[p.tag["use"]] = bar
        skip = False
        for n, c in enumerate(self.I):
            if c.tag.get("side"): continue
            if c.op == "s_barrier": bar += 1
            if c.kind == "wait":
                m = re.search(r"vmcnt\((\d+)\)", c.text)
                if m:
                    assert int(m.group(1)) <= 63
                    while len(vm) > int(m.group(1)): retire(vm.pop(0))
                m = re.search(r"lgkmcnt\((\d+)\)", c.text)
                if m:
                    k = int(m.group(1)); assert k <= 15
                    if any(x.kind == "smem" for x in lg):
                        assert k == 0, f"counted lgkmcnt with SMEM outstanding: {n} {c.text}"
                    while len(lg) > k: retire(lg.pop(0))
                if "covers" in c.tag:
                    assert not any(p.tag.get("name") == c.tag["covers"] for p in vm + lg), f"wait {n} does not cover {c.tag['covers']}"
                continue
            if c.kind == "none": continue
            for q in (vm, lg):
                for p in q:
                    bad = p.w & (c.r | c.w)
                    assert not bad, f"ins {n} '{c.text}' touches {sorted(bad)} still in flight from '{p.text}'"
            priv = c.tag.get("private", False)
            if "use" in c.tag:
                k = c.tag["use"]
                assert k in filled, f"ins {n} '{c.text}' reads {k} never filled"
                assert not any(p.tag.get("fill") == k for p in vm + lg), f"ins {n} '{c.text}' reads {k} before its producer is waited"
                assert priv or fill_ret[k] < bar, f"ins {n} '{c.text}' reads {k} without a barrier after the producer's wait"
            fr = c.tag.get("frees")
            for k in ([] if fr is None else fr if isinstance(fr, list) else [fr]):
                assert not any(p.tag.get("use") == k for p in lg), f"ins {n} '{c.text}' overwrites {k} while reads are in flight"
                assert not any(x.tag.get("use") == k for x in self.I[n+1:]), f"ins {n} '{c.text}' overwrites {k} that is read later"
                assert priv or use_ret.get(k, -1) < bar, f"ins {n} '{c.text}' overwrites {k} without a barrier after the last read"
            if "fill" in c.tag: filled.add(c.tag["fill"])
            if c.kind in ("dma", "vload", "vstore", "vcache"):
                vm.append(c); assert len(vm) <= 63, f"vmcnt overflow at {n}"
            if c.kind in ("ds_read", "ds_write", "smem"):
                lg.append(c)
    def vm_after(self, pred):
        k = 0
        for c in reversed(self.I):
            if c.tag.get("side"): continue
            if c.kind in ("dma", "vload", "vstore", "vcache"):
                if pred(c): return k
                k += 1
        raise KeyError("no such vector-memory instruction")
    def lg_after(self, pred):
        k = 0
        for c in reversed(self.I):
            if c.tag.get("side"): continue
            if c.kind in ("ds_read", "ds_write", "smem"):
                if pred(c): return k
                k += 1
        raise KeyError("no such LDS instruction")
    def text(self):
        return "\n".join(i.text if (i.label or i.directive or i.text.startswith(";")) else "    " + i.text for i in self.I) + "\n"

def header(A, grid=256, block=256, lds=163840, name=KNAME, comments=()):
    for c in comments: A.I.append(Ins("; " + c))
    A.I.append(Ins(f"; @launch grid=({grid},1,1) block=({block},1,1) lds={lds}"))
    A('.amdgcn_target "amdgcn-amd-amdhsa--gfx950"')
    A(".text"); A(f".globl {name}"); A(".p2align 8"); A(f".type {name},@function"); A(f"{name}:")

def footer(A, vgpr=512, accum=256, name=KNAME, sgpr=102):
    A('.section .rodata,"a"'); A(".p2align 6"); A(f".amdhsa_kernel {name}")
    A(f".amdhsa_next_free_vgpr {vgpr}"); A(f".amdhsa_next_free_sgpr {sgpr}"); A(f".amdhsa_accum_offset {accum}")
    A(".amdhsa_group_segment_fixed_size 0"); A(".amdhsa_kernarg_size 48"); A(".amdhsa_user_sgpr_count 2")
    A(".amdhsa_user_sgpr_kernarg_segment_ptr 1"); A(".amdhsa_system_sgpr_workgroup_id_x 1"); A(".end_amdhsa_kernel")

def srd(A, base, lo, nbytes):
    A(f"s_mov_b32 s{base}, s{lo}"); A(f"s_mov_b32 s{base+1}, s{lo+1}")
    A(f"s_mov_b32 s{base+2}, {nbytes:#x}"); A(f"s_mov_b32 s{base+3}, 0x20000")

def store_stamps(A, srdbase, stamps, vtid, vtmp, wg="s2"):
    A("s_waitcnt lgkmcnt(0)")
    A(f"s_lshl_b32 s99, {wg}, 8"); A(f"v_mov_b32 v{vtmp+2}, s99")
    A(f"v_cmp_eq_u32 vcc, 0, v{vtid}"); A("s_and_saveexec_b64 s[100:101], vcc"); A("s_cbranch_execz L_stamp_done")
    for i, s in enumerate(stamps):
        A(f"v_mov_b32 v{vtmp}, s{s}"); A(f"v_mov_b32 v{vtmp+1}, s{s+1}")
        A(f"buffer_store_dwordx2 v[{vtmp}:{vtmp+1}], v{vtmp+2}, s[{srdbase}:{srdbase+3}], 0 offen offset:{8*i}")
        A("s_nop 1")
    A("L_stamp_done:"); A("s_mov_b64 exec, s[100:101]")

def weave(main, fill, per=2, start=0):
    out, f = [], list(fill)
    for i, m in enumerate(main):
        out.append(m)
        if i >= start:
            for _ in range(per):
                if f: out.append(f.pop(0))
    return out + f
```

```python
import sys, math, struct, re
from asmlib import *

def f32hex(x):
    return "0x%08x" % struct.unpack("<I", struct.pack("<f", x))[0]

NS, SUB = 6, 8192
RINGB = NS * SUB
XA = 2 * RINGB
XM = XA + 49152
SB = 64
def S(T, t): return SB + ((T >> 1) * 3 + t) * 8 + (T & 1) * 4
def P(j, t): return SB + (j * 3 + t) * 8
def UQ(z): return SB + z * 8 + 4
def Q(t, s): return (t * 8 + s) * 4
def KF(T, s): return 96 + (T & 1) * 32 + s * 4
def VF(n, u, k): return 192 + (n & 1) * 32 + (u * 4 + k) * 4
def O(k, t): return 16 + (k * 3 + t) * 4
AONE, AL, ANM = 160, 96, 164
VPW, VPR, VM, VX, VVD, VL, VRO, VMW, VMR, VKD, VKR, VT, VN = 0, 1, 2, 5, 6, 12, 8, 7, 15, 16, 20, 24, 36
sQ, sK, sV, sO, sW = 12, 16, 20, 24, 28
sWAVE, sM0B, sKOFF, sVA, sVB_, sSO, sC, sQB, sFO, sFP, sEXP, sNEW, sXS, sXR, sCNT, sT0, sT1, sX, sQH = range(32, 51)
sQM, sQO, sVC, sD, sXCC = sCNT, sEXP, 52, 4, sVA
MF = "v_mfma_f32_16x16x32_bf16"

DEF = dict(L=[3] * 15 + [4] * 8 + [3, 4] + [5] * 7, flag_epoch=26, poll_epoch=28, check_epoch=29, stamps=False, ktail=9, vtail=6,
           early=7, quiet=1, og=[[[0, 1, 2, 3], [4, 5, 6, 7], [8, 9, 10, 11]]] * 2, fast=True, nearpoll="nt", nearld="nt", warm="v", kcap=13.2, hush0=8, scap=14, c1share=0.8, prerem=False, xmap=False, outfl="", spin=1 << 16, cyc=None, cycwave=0)

def txt(x): return x[0] if isinstance(x, tuple) else x
def cost(x):
    if callable(x): return 0
    if isinstance(x, list): return sum(map(cost, x))
    t = txt(x)
    if "\n" in t: return sum(cost(y) for y in t.split("\n"))
    if t.startswith("s_"): return 0
    if t.startswith(("v_exp", "v_rcp")): return 8
    if t.startswith("ds_write_b128"): return 20
    if t.startswith("ds_write"): return 10
    if t.startswith("buffer_"): return 10
    return 4
def is_mem(x):
    if isinstance(x, list): return any(map(is_mem, x))
    return not callable(x) and ("ds_" in txt(x) or "buffer_" in txt(x))

def gen(**kw):
    o = dict(DEF); o.update(kw)
    A = Asm()
    header(A, comments=["GQA attention, B=8 Hq=16 Hkv=8 Sq=96 Sk=1024 D=256, bf16 in and out."])
    st, side, cy = [], [], []
    def stamp():
        if o["stamps"]:
            r = 60 + 2 * len(st); st.append(r); A(f"s_memrealtime s[{r}:{r+1}]"); A("s_waitcnt lgkmcnt(0)")
    def cyc(kind):
        if o["cyc"] and kind in o["cyc"]:
            r = 60 + len(cy); cy.append(r); assert r < 98
            A("s_memtime s[98:99]"); A("s_waitcnt lgkmcnt(0)"); A(f"s_mov_b32 s{r}, s98")
    def emit(L):
        for x in L:
            if callable(x): x()
            elif isinstance(x, list): emit(x)
            elif isinstance(x, tuple): A(x[0], **x[1])
            else: A(x)
    def wait_vm(pred): A(f"s_waitcnt vmcnt({A.vm_after(pred)})")
    def named(name): return lambda c: c.tag.get("name") == name
    def need(name): return lambda: A(f"s_waitcnt lgkmcnt({min(A.lg_after(named(name)), 15)})")

    def sched(M, mem=(), valu=(), vspan=(0.0, 1.0), quiet=0, cap=None, keep=False):
        n = len(M)
        M = [m if isinstance(m, list) else [m] for m in M]
        queue, fixed = [], [[] for _ in range(n)]
        for items, slots in [m for m in mem if len(m) == 2]:
            assert len(slots) >= len(items)
            for x, k in zip(items, slots):
                if isinstance(x, list):
                    if len(x) > 1: fixed[max(k - 1, 0)].insert(0, x[:-1])
                    x = x[-1]
                fixed[k].append(x)
        for items, f0, f1 in [m for m in mem if len(m) == 3]:
            for i, x in enumerate(items):
                queue.append((min(n - 1, int((f0 + (f1 - f0) * (i + 0.5) / len(items)) * n)), len(queue), x))
        streams = [[q for q in queue if p in txt(q[2][-1] if isinstance(q[2], list) else q[2])] for p in ("ds_read", "buffer_", "ds_write")]
        V = [dict(x=x, ins=None if callable(x) or isinstance(x, list) else [Ins(y) for y in txt(x).split("\n")]) for x in valu]
        for v in V:
            v["r"] = set().union(*[i.r for i in v["ins"]]) if v["ins"] else set()
            v["w"] = set().union(*[i.w for i in v["ins"]]) if v["ins"] else set()
            v["fence"] = v["ins"] is None
            v["mem"] = is_mem(v["x"])
        lo, hi = int(vspan[0] * n + 1e-6), max(int(vspan[1] * n), 1)
        extra = [sum(cost(y) for y in m[:-1]) for m in M]
        vtot = sum(cost(v["x"]) for v in V)
        mtot = sum(cost(q[2]) for q in queue if lo <= q[0] < hi) + sum(extra[lo + 1:hi + 1]) + sum(cost(f) for f in fixed[lo:hi])
        cap = cap or max(8.0, (vtot + mtot) / (hi - lo))
        slot = 0
        def ready(k):
            v = V[k]
            if isinstance(v["x"], tuple) and v["x"][1].get("minslot", 0) > slot: return False
            for u in V[:k]:
                if u["fence"] or v["fence"] or (u["mem"] and v["mem"]): return False
                if u["w"] & (v["r"] | v["w"]) or u["r"] & v["w"]: return False
            return True
        credit, hush, lastw = 0.0, 0, set()
        setup_done = set()
        for i in range(n):
            slot = i
            lead = [y for y in M[i][:-1] if callable(y)] if i == 0 else []
            emit(lead); emit([y for y in M[i][:-1] if not callable(y)]); emit(M[i][-1:])
            room = cap + credit - (extra[i + 1] if i + 1 < n else 0)
            if i + 1 < n: emit([y for y in M[i + 1][:-1] if callable(y)])
            for S_ in streams[1:2]:
                for q in S_:
                    if isinstance(q[2], list) and q[1] not in setup_done and len(q[2]) > 1 and q[0] - i <= 2 and q is S_[0]:
                        emit(q[2][:-1]); setup_done.add(q[1])
            emit(fixed[i]); room -= cost(fixed[i])
            placed = is_mem(fixed[i])
            k = next((k for k in range(len(V)) if V[k]["mem"] and ready(k)), None)
            if k is not None and i >= lo:
                v = V.pop(k); emit([v["x"]]); room -= cost(v["x"]); placed = True
                if "ds_write_b128" in txt(v["x"]): hush = quiet + 1
            if streams[2] and (streams[2][0][0] <= i or len(streams[2]) >= n - i):
                x = streams[2].pop(0)[2]; emit([x]); room -= cost(x); placed = True; hush = quiet + 1
            for si, S_ in enumerate(streams[:2]):
                left = n - i
                while S_ and (S_[0][0] <= i or len(S_) >= left):
                    if si == 0 and hush > 0 and len(S_) < left: break
                    if si == 1 and placed and len(S_) < left: break
                    q = S_.pop(0); x = q[2]
                    if isinstance(x, list):
                        if q[1] not in setup_done: emit(x[:-1])
                        x = x[-1]
                    emit([x]); room -= cost(x); placed = True
                    if len(S_) < left and not (S_ and S_[0][0] < i - 1): break
            hush = max(hush - 1, 0)
            if i >= lo:
                while V:
                    if V[0]["fence"]:
                        emit([V.pop(0)["x"]]); continue
                    cand = [k for k in range(min(len(V), 14)) if not V[k]["mem"] and not V[k]["fence"] and ready(k)]
                    fit = [k for k in cand if cost(V[k]["x"]) <= room + 2 and not (lastw & V[k]["r"] and len(cand) > 1)]
                    fit = fit or [k for k in cand if cost(V[k]["x"]) <= room + 2]
                    if not fit: break
                    big = [k for k in fit if cost(V[k]["x"]) == 8]
                    k = big[0] if big and room >= 7 and big[0] < 8 else fit[0]
                    v = V.pop(k); emit([v["x"]]); room -= cost(v["x"])
                    lastw = v["w"] if txt(v["x"]).startswith(TRANS) else set()
                credit = max(min(room, 8.0), -12.0) if cap > 8 else min(room, 0.0)
                lastw = set()
        for S_ in streams:
            for q in S_: emit(q[2] if isinstance(q[2], list) and q[1] not in setup_done else [q[2][-1]] if isinstance(q[2], list) else [q[2]])
        left = [(v["x"][0], {k: y for k, y in v["x"][1].items() if k != "minslot"}) if isinstance(v["x"], tuple) else v["x"] for v in V]
        if keep: return left
        emit(left)

    A("s_cmp_ge_u32 s2, 256"); A("s_cbranch_scc1 L_end")
    stamp(); cyc("s")
    A("s_load_dwordx8 s[4:11], s[0:1], 0"); A("s_load_dwordx2 s[52:53], s[0:1], 40")
    A("v_lshrrev_b32 v1, 6, v0"); A("v_and_b32 v63, 63, v0"); A(f"v_readfirstlane_b32 s{sWAVE}, v1")
    A("v_lshrrev_b32 v62, 5, v63"); A("v_and_b32 v61, 31, v63"); A("v_xor_b32 v61, v61, v62")
    A("v_lshlrev_b32 v61, 4, v61"); A("v_lshl_add_u32 v61, v62, 9, v61")
    if o["xmap"]:
        A("s_lshr_b32 s54, s2, 2"); A("s_and_b32 s55, s2, 3")
    else:
        A("s_and_b32 s54, s2, 7"); A("s_lshl_b32 s54, s54, 3"); A("s_lshr_b32 s55, s2, 5"); A("s_add_u32 s54, s54, s55")
        A("s_bfe_u32 s55, s2, 0x20003")
    A("s_and_b32 s56, s55, 1"); A("s_lshr_b32 s57, s55, 1")
    A(f"s_and_b32 s{sX}, s{sWAVE}, 1"); A(f"s_lshr_b32 s{sQH}, s{sWAVE}, 1")
    A(f"s_lshl_b32 s{sT0}, s{sQH}, 7"); A(f"v_xor_b32 v{VKD}, s{sT0}, v61")
    for i in range(1, 4): A(f"v_xor_b32 v{VKD+i}, {i*32}, v{VKD}")
    A(f"s_mul_i32 s{sQB}, s54, 192"); A(f"s_mul_i32 s{sT0}, s56, 96"); A(f"s_add_u32 s{sQB}, s{sQB}, s{sT0}"); A(f"s_lshl_b32 s{sQB}, s{sQB}, 9")
    A(f"s_lshl_b32 s58, s{sQH}, 12")
    A(f"s_mul_i32 s{sT0}, s{sX}, {3*SUB}"); A(f"s_add_u32 s{sT0}, s{sT0}, s58")
    A(f"s_add_u32 s{sQM}, s{sT0}, {XA}"); A(f"s_add_u32 s{sQO}, s{sT0}, s{sQB}")
    A("s_waitcnt lgkmcnt(0)")
    cyc("p")
    srd(A, sQ, 4, 6291456)
    def qdma(i):
        A(f"s_add_u32 m0, s{sQM}, {i*SUB}"); A(f"s_add_u32 s{sSO}, s{sQO}, {i*SUB}")
        for jj in range(4):
            A(f"buffer_load_dwordx4 v{VKD+jj}, s[{sQ}:{sQ+3}], s{sSO} offen offset:{jj*1024} nt lds", fill="Q")
    qdma(0); qdma(1)
    cyc("p")
    if o["warm"]:
        A("s_getpc_b64 s[80:81]"); A("L_pc:")
    if "s" in o["warm"]:
        A("s_and_b32 s82, s80, 0xfffff000"); A("s_mov_b32 s83, s81")
        wl = o.get("warmlines", 1)
        for k in range(1, 6):
            for x in range(wl):
                A(f"s_load_dword s{84 + (k-1)*wl + x}, s[82:83], {k*4096 + 128*x}")
    if "v" in o["warm"]:
        A(f"s_lshr_b32 s{sT0}, s2, 3"); A(f"s_lshl_b32 s{sT0}, s{sT0}, 2"); A(f"s_add_u32 s{sT0}, s{sT0}, s{sWAVE}"); A(f"s_lshl_b32 s{sT0}, s{sT0}, 8")
        A(f"v_lshl_add_u32 v40, v63, 2, s{sT0}"); A("v_min_u32 v40, L_code_end-L_pc-4, v40")
        A("global_load_dword v41, v40, s[80:81]")
    srd(A, sW, 52, 268435456); srd(A, sK, 6, 33554432); srd(A, sV, 8, 33554432); srd(A, sO, 10, 6291456)
    A(f"s_lshl_b32 s59, s54, 19"); A(f"s_lshl_b32 s{sT0}, s57, 18"); A(f"s_add_u32 s59, s59, s{sT0}")
    A(f"s_lshl_b32 s{sT0}, s{sX}, 17"); A(f"s_add_u32 s59, s59, s{sT0}")
    A(f"s_add_u32 s{sKOFF}, s59, s58")
    A(f"s_mul_i32 s{sM0B}, s{sX}, {RINGB}"); A(f"s_add_u32 s{sM0B}, s{sM0B}, s58")
    A(f"s_lshl_b32 s{sFO}, s2, 2"); A(f"s_add_u32 s{sFO}, s{sFO}, s{sWAVE}"); A(f"s_lshl_b32 s{sFO}, s{sFO}, 9")
    A(f"s_xor_b32 s{sFP}, s{sFO}, {(2 if o['xmap'] else 16) * 2048}")
    if o["stamps"] or o["cyc"]:
        A(f"s_add_u32 s{sFO}, s{sFO}, 0x100000"); A(f"s_add_u32 s{sFP}, s{sFP}, 0x100000")
    A(f"s_lshl_b32 s{sT0}, s{sQH}, 14"); A(f"s_add_u32 s{sVC+3}, s59, s{sT0}"); A(f"s_lshl_b32 s{sT1}, s{sX}, 7")
    A(f"s_add_u32 s{sVC+3}, s{sVC+3}, s{sT1}"); A(f"s_lshl_b32 s{sT0}, s57, 8"); A(f"s_add_u32 s{sVC+3}, s{sVC+3}, s{sT0}")
    for c in range(3): A(f"s_xor_b32 s{sVC+c}, s{sVC+3}, {(3-c)*128}")
    A(f"s_mul_i32 s{sXR}, s{sQH}, 24576"); A(f"s_add_u32 s{sXR}, s{sXR}, s{sQB}"); A(f"s_add_u32 s{sXR}, s{sXR}, s{sT0}")
    A(f"s_lshl_b32 s{sT0}, s{sX}, 7"); A(f"s_add_u32 s{sXR}, s{sXR}, s{sT0}"); A(f"s_xor_b32 s{sXS}, s{sXR}, 256")
    A(f"s_mov_b32 s{sC}, {f32hex(math.log2(math.e) / 16)}")
    A("v_and_b32 v60, 15, v63"); A("v_lshrrev_b32 v59, 4, v63")
    A("v_xor_b32 v58, v59, v60"); A("v_lshlrev_b32 v58, 4, v58"); A("v_lshl_add_u32 v58, v60, 9, v58")
    A(f"s_mul_i32 s{sT0}, s{sX}, {RINGB}"); A(f"s_mul_i32 s{sT1}, s{sQH}, {3*SUB}"); A(f"s_add_u32 s{sT1}, s{sT1}, {XA}")
    for s in range(4):
        A(f"v_xor_b32 v57, {s*64}, v58"); A(f"v_add_u32 v{VKR+s}, s{sT0}, v57"); A(f"v_add_u32 v{VT+s}, s{sT1}, v57")
    A("v_lshrrev_b32 v58, 3, v63"); A("v_and_b32 v57, 6, v58"); A("v_xor_b32 v57, v57, v63"); A("v_and_b32 v57, 7, v57")
    A("v_lshlrev_b32 v57, 4, v57"); A(f"v_lshl_add_u32 v{VVD}, v58, 9, v57")
    A("v_lshrrev_b32 v58, 2, v63"); A("v_bfe_u32 v57, v63, 3, 2"); A("v_lshlrev_b32 v57, 5, v57")
    A("v_lshl_add_u32 v57, v58, 7, v57"); A("v_and_b32 v58, 3, v63"); A("v_lshl_add_u32 v57, v58, 3, v57")
    for k in range(4):
        A(f"v_xor_b32 v58, {k*32}, v57"); A(f"v_add_u32 v{VRO+k}, s{sT0}, v58")
    A("v_lshlrev_b32 v58, 4, v63"); A(f"s_xor_b32 s{sT1}, s{sWAVE}, 1")
    for v, w in ((VPW, sWAVE), (VPR, sT1)):
        A(f"s_mul_i32 s{sT0}, s{w}, 12288"); A(f"s_add_u32 s{sT0}, s{sT0}, {XA}"); A(f"v_add_u32 v{v}, s{sT0}, v58")
    for v, w in ((VMW, sWAVE), (VMR, sT1)):
        A(f"s_lshl_b32 s{sT0}, s{w}, 11"); A(f"s_add_u32 s{sT0}, s{sT0}, {XM}"); A(f"v_add_u32 v{v}, s{sT0}, v58")
    A("v_mov_b32 v58, 0x3f803f80")
    for r in range(4): A(f"v_accvgpr_write_b32 a{AONE+r}, v58")

    def dma(n):
        tag = dict(fill=n)
        if n >= NS: tag["frees"] = n - NS
        G = []
        for i in range(4):
            g = [f"s_add_u32 m0, s{sM0B}, {(n % NS) * SUB}"] if i == 0 else []
            if n < 16:
                so = sD + (n & 1) * 4
                if i == 0: g.insert(0, f"s_add_u32 s{so}, s{sKOFF}, {n*SUB}")
                g.append((f"buffer_load_dwordx4 v{VKD+i}, s[{sK}:{sK+3}], s{so} offen offset:{i*1024} nt lds", tag))
            else:
                so = sD + (n & 1) * 4 + i
                g.insert(0, f"s_add_u32 s{so}, s{sVC + ((n-16)>>2)}, {(n&3)*32768 + i*3072}")
                g.append((f"buffer_load_dwordx4 v{VVD}, s[{sV}:{sV+3}], s{so} offen offset:{i*1024} nt lds", tag))
            G.append(g)
        return G
    cyc("p")
    qdma(2)
    A(f"buffer_load_dword v{VT+8}, off, s[{sW}:{sW+3}], s{sFP} sc1", name="entry")
    A(f"buffer_load_dword v{VT+9}, off, s[{sW}:{sW+3}], s{sFO} sc1", name="entry")
    emit(dma(0)); emit(dma(1))
    cyc("p")
    wait_vm(named("entry"))
    cyc("p")
    A(f"v_readfirstlane_b32 s{sEXP}, v{VT+8}"); A(f"v_readfirstlane_b32 s{sNEW}, v{VT+9}")
    if "s" in o["warm"]: A("s_waitcnt lgkmcnt(0)")
    A("s_barrier")
    stamp(); cyc("p")
    for t in range(3):
        for s in range(8):
            A(f"ds_read_b128 a[{Q(t,s)}:{Q(t,s)+3}], v{VT+(s&3)} offset:{t*SUB + (s>>2)*256}", use="Q")
        if t == 0:
            emit(dma(2))
        if t == 1:
            A(f"s_add_u32 s{sEXP}, s{sEXP}, 1"); A(f"s_add_u32 s{sNEW}, s{sNEW}, 1")
            A(f"s_getreg_b32 s{sXCC}, hwreg(HW_REG_XCC_ID, 0, 4)")
            A(f"v_mov_b32 v{VT+8}, s{sEXP}"); A(f"v_mov_b32 v{VT+9}, s{sXCC}"); A("s_mov_b64 exec, 1")
            A(f"buffer_store_dwordx2 v[{VT+8}:{VT+9}], off, s[{sW}:{sW+3}], s{sFO} offset:8 sc1")
            A("s_mov_b64 exec, -1")
    issued = 3

    def spin(label, soff, off, sval, vt, wide=False):
        A(f"s_cmp_lg_u32 s{sT0}, s{sval}"); A(f"s_cbranch_scc1 L_{label}_spin"); A(f"L_{label}_ok:")
        side.extend([f"L_{label}_spin:", f"s_mov_b32 s{sCNT}, {o['spin']}", f"L_{label}_loop:",
                     (f"buffer_load_dwordx2 v[{vt}:{vt+1}]" if wide else f"buffer_load_dword v{vt}") + f", off, s[{sW}:{sW+3}], s{soff} offset:{off} sc1", "s_waitcnt vmcnt(0)",
                     f"v_readfirstlane_b32 s{sT0}, v{vt}", f"s_sub_u32 s{sCNT}, s{sCNT}, 1", "s_nop 0",
                     f"s_cmp_eq_u32 s{sT0}, s{sval}", f"s_cbranch_scc1 L_{label}_ok",
                     f"s_cmp_eq_u32 s{sCNT}, 0", f"s_cbranch_scc1 L_{label}_ok", "s_sleep 2", f"s_branch L_{label}_loop"])
    forks = []
    def fork(label):
        if o["fast"]:
            A(f"s_cmp_eq_u32 s{sXCC}, 0"); A(f"s_cbranch_scc1 L_{label}_far"); A(f"L_{label}_near:"); forks.append(label)
    def join(label):
        if o["fast"]: A(f"L_{label}_join:")
    def kreads(n):
        return [(f"ds_read_b128 a[{KF(n,s)}:{KF(n,s)+3}], v{VKR+(s&3)} offset:{(n%NS)*SUB + (s>>2)*256}", dict(use=n, name=("f", n, s))) for s in range(8)]
    def vreads(n):
        return [(f"ds_read_b64_tr_b16 a[{VF(n,u,k)+2*h}:{VF(n,u,k)+2*h+1}], v{VRO+k} offset:{(n%NS)*SUB + u*4096 + h*2048}",
                 dict(use=n, name=("f", n, u * 4 + k))) for u in range(2) for k in range(4) for h in range(2)]
    def kmfma(n):
        return [f"{MF} v[{S(n,t)}:{S(n,t)+3}], a[{KF(n,s)}:{KF(n,s)+3}], a[{Q(t,s)}:{Q(t,s)+3}], " + (f"v[{S(n,t)}:{S(n,t)+3}]" if s else "0")
                for s in range(8) for t in range(3)]
    def acc(c, z):
        return f"v[{16+4*z}:{19+4*z}]" if c & 1 else f"a[{24*c+4*z}:{24*c+4*z+3}]"
    def vm1(n, u, k, t):
        j, r = 2 * (n & 3) + u, acc((n - 16) >> 2, k * 3 + t)
        return f"{MF} {r}, a[{VF(n,u,k)}:{VF(n,u,k)+3}], v[{P(j,t)}:{P(j,t)+3}], " + ("0" if j == 0 else r)
    def vmfma(n, u):
        j = 2 * (n & 3) + u
        L = [vm1(n, u, k, t) for k in range(4) for t in range(3)]
        if n < 20:
            L = [f"{MF} a[{AL+4*t}:{AL+4*t+3}], a[{AONE}:{AONE+3}], v[{P(j,t)}:{P(j,t)+3}], "
                 + ("0" if j == 0 else f"a[{AL+4*t}:{AL+4*t+3}]") for t in range(3)] + L
        return L
    def maxes(T):
        L = []
        for half in range(2):
            for t in range(3):
                b = S(T, t)
                if T == 0: L.append(f"v_max3_f32 v{VM+t}, v{b}, v{b+1}, v{b+2}" if half == 0 else f"v_max_f32 v{VM+t}, v{VM+t}, v{b+3}")
                else: L.append(f"v_max3_f32 v{VM+t}, v{VM+t}, v{b+2*half}, v{b+2*half+1}")
        return L
    def early_head(j):
        return ([f"v_mul_f32 v{VN+t}, s{sC}, v{VM+t}" for t in range(3)] + [f"v_ceil_f32 v{VN+t}, v{VN+t}" for t in range(3)]
                + [f"v_accvgpr_write_b32 a{ANM+3*j+t}, v{VN+t}" for t in range(3)])
    def early_exp(T):
        L, pend = [], []
        for t in range(3):
            b, p = S(T, t), P(T >> 1, t) + 2 * (T & 1)
            L += [f"v_fma_f32 v{b+e}, v{b+e}, s{sC}, -v{VN+t}" for e in range(4)] + pend
            L += [f"v_exp_f32 v{b+e}, v{b+e}" for e in range(4)]
            pend = [f"v_cvt_pk_bf16_f32 v{p}, v{b}, v{b+1}", f"v_cvt_pk_bf16_f32 v{p+1}, v{b+2}, v{b+3}"]
        return L + pend
    def soft(j):
        out, pend = [], []
        if j < o["early"]:
            k = UQ(j & 1)
            for f in ("v_accvgpr_read_b32 v{k}, a{a}", "v_sub_f32 v{k}, v{m}, v{k}", "v_cvt_u32_f32 v{k}, v{k}",
                      "v_min_u32 v{k}, 0xff, v{k}", "v_mul_u32_u24 v{k}, 0x800080, v{k}"):
                out += [f.format(k=k + t, a=ANM + 3 * j + t, m=VM + t) for t in range(3)]
            return out + [f"v_pk_sub_u16 v{P(j,t)+i}, v{P(j,t)+i}, v{k+t} clamp" for t in range(3) for i in range(4)]
        for t in range(3):
            b = P(j, t)
            if True:
                for i in range(0, 8, 2):
                    out += [f"v_fma_f32 v{b+i}, v{b+i}, s{sC}, -v{VM+t}", f"v_fma_f32 v{b+i+1}, v{b+i+1}, s{sC}, -v{VM+t}"] + pend
                    out += [f"v_exp_f32 v{b+i}, v{b+i}", f"v_exp_f32 v{b+i+1}, v{b+i+1}"]
                    pend = [f"v_cvt_pk_bf16_f32 v{b+i//2}, v{b+i}, v{b+i+1}"]
        return out + pend
    def owrite(c, zs):
        return [(f"ds_write_b128 v{VPW}, {acc(c, z)} offset:{z*1024}", dict(fill=("O", c, z), frees=["Q"] if c == 0 else [("O", 0, z)])) for z in zs]
    def oread(c, zs):
        return [(f"ds_read_b128 v[{UQ(6*c+z)}:{UQ(6*c+z)+3}], v{VPR} offset:{z*1024}", dict(use=("O", c, z), name=("or", c, z))) for z in zs]
    def oadd(c, z):
        return [f"v_add_f32 v{16+4*z+e}, v{16+4*z+e}, v{UQ(6*c+z)+e}" for e in range(4)]
    def dmas(n):
        nonlocal issued
        L = []
        if n == o["poll_epoch"]:
            if o["fast"]:
                L.append([(f"s_cmp_eq_u32 s{sXCC}, 0\ns_cbranch_scc1 L_pollq_far\nL_pollq_near:\n"
                           f"buffer_load_dword v{VPOLL}, off, s[{sW}:{sW+3}], s{sFP} {o['nearpoll']}\nL_pollq_join:", dict(name="poll", xs=True))])
                forks.append("pollq")
            else:
                L.append([(f"buffer_load_dword v{VPOLL}, off, s[{sW}:{sW+3}], s{sFP}", dict(name="poll", xs=True))])
        while issued < min(n + 1 + o["L"][n], 32):
            L += dma(issued); issued += 1
        return L
    RX = lambda i: UQ(i)
    RML, VPOLL, VLANE, VQ, VA4, VA2, VXO = UQ(6), UQ(7) + 2, UQ(7) + 3, UQ(8), UQ(8) + 1, UQ(8) + 2, UQ(8) + 3
    RML2, VTW, VTR = UQ(7), UQ(9), UQ(10)
    G = lambda i: (UQ(10) + 1 + i) if i < 3 else (UQ(11) + i - 3) if i < 6 else (SB + i - 6)
    U = lambda z: P(0, 0) + 8 * (z + 1)
    OUT = lambda i: UQ(12 + i)
    def rowoff(v, lane):
        return [f"v_lshrrev_b32 v{v}, 3, v{lane}", f"v_lshlrev_b32 v{v}, 5, v{v}", f"v_and_or_b32 v{v}, v{lane}, 7, v{v}", f"v_lshlrev_b32 v{v}, 4, v{v}"]
    def recv():
        wait_vm(named("poll"))
        A(f"v_readfirstlane_b32 s{sT0}, v{VPOLL}"); spin("poll", sFP, 0, sEXP, VPOLL)
        fork("recv")
        A(f"buffer_load_dwordx4 v[{RML}:{RML+3}], v{VA4}, s[{sW}:{sW+3}], s{sFP} offen offset:128 {o['nearld']}", name="rml", xs=True)
        A(f"buffer_load_dwordx2 v[{RML2}:{RML2+1}], v{VA2}, s[{sW}:{sW+3}], s{sFP} offen offset:384 {o['nearld']}", name="rml", xs=True)
        for i in range(6):
            A(f"s_add_u32 s{sSO}, s{sXR}, {i*4096}")
            A(f"buffer_load_dwordx4 v[{RX(i)}:{RX(i)+3}], v{VXO}, s[{sO}:{sO+3}], s{sSO} offen {o['nearld']}", name=("rx", i), xs=True)
        join("recv")
    def tail_addrs():
        a, b = G(3), G(4)
        L = [f"v_mbcnt_lo_u32_b32 v{VLANE}, -1, 0", f"v_mbcnt_hi_u32_b32 v{VLANE}, -1, v{VLANE}", f"v_and_b32 v{VQ}, 15, v{VLANE}",
             f"v_lshlrev_b32 v{VA4}, 4, v{VQ}", f"v_lshlrev_b32 v{VA2}, 3, v{VQ}", f"v_mov_b32 v{VXO}, v{VX}",
             f"s_mul_i32 s{sT1}, s{sWAVE}, 12288\ns_add_u32 s{sT1}, s{sT1}, {XA}\nv_lshrrev_b32 v{a}, 5, v{VLANE}",
             f"v_and_b32 v{b}, 7, v{VQ}", f"v_xor_b32 v{a}, v{a}, v{b}", f"v_lshlrev_b32 v{a}, 4, v{a}",
             f"v_bfe_u32 v{b}, v{VLANE}, 4, 1", f"v_lshl_add_u32 v{a}, v{b}, 3, v{a}", f"v_lshl_add_u32 v{a}, v{VQ}, 7, v{a}"]
        for k in range(4): L += [f"v_xor_b32 v{VTW+k}, {32*k}, v{a}", f"v_add_u32 v{VTW+k}, s{sT1}, v{VTW+k}"]
        L += [f"v_lshrrev_b32 v{a}, 3, v{VLANE}", f"v_xor_b32 v{b}, v{a}, v{VLANE}", f"v_and_b32 v{b}, 7, v{b}", f"v_lshlrev_b32 v{b}, 4, v{b}",
              f"v_lshl_add_u32 v{a}, v{a}, 7, v{b}", f"v_add_u32 v{VTR}, s{sT1}, v{a}"]
        return L
    def lwrite():
        return [(f"ds_write_b32 v{VMW}, a{AL+4*t} offset:{1024 + 4*t}", dict(fill="l")) for t in range(3)]
    def lsum():
        return [x for t in range(3) for x in (f"v_accvgpr_read_b32 v{VX}, a{AL+4*t}", f"v_add_f32 v{VL+t}, v{VL+t}, v{VX}")]
    def send_prep():
        return [f"v_mbcnt_lo_u32_b32 v{VMW}, -1, 0", f"v_mbcnt_hi_u32_b32 v{VMW}, -1, v{VMW}"] + rowoff(VX, VMW)
    def send():
        L = []
        for i in range(6):
            a, b = 16 + 8 * i, 20 + 8 * i
            L += [f"v_cvt_pk_bf16_f32 v{a}, v{a}, v{a+1}", f"v_cvt_pk_bf16_f32 v{a+1}, v{a+2}, v{a+3}",
                  f"v_cvt_pk_bf16_f32 v{a+2}, v{b}, v{b+1}", f"v_cvt_pk_bf16_f32 v{a+3}, v{b+2}, v{b+3}",
                  (f"s_add_u32 s{sSO}, s{sXS}, {i*4096}\nbuffer_store_dwordx4 v[{a}:{a+3}], v{VX}, s[{sO}:{sO+3}], s{sSO} offen", dict(name="send", xs=True))]
        L += [f"v_mov_b32 v20, v{VM}", f"v_mov_b32 v21, v{VL}", f"v_mov_b32 v22, v{VM+1}", f"v_mov_b32 v23, v{VL+1}",
              f"v_mov_b32 v28, v{VM+2}", f"v_mov_b32 v29, v{VL+2}", f"v_lshlrev_b32 v31, 4, v{VMW}", f"v_lshlrev_b32 v30, 3, v{VMW}",
              ("s_mov_b64 exec, 0xffff\n"
               f"buffer_store_dwordx4 v[20:23], v31, s[{sW}:{sW+3}], s{sFO} offen offset:128\n"
               f"buffer_store_dwordx2 v[28:29], v30, s[{sW}:{sW+3}], s{sFO} offen offset:384\n"
               "s_mov_b64 exec, -1", dict(name="send", xs=True))]
        return L
    def factors():
        mr = lambda t: RML + 2 * t if t < 2 else RML2
        L = [lambda: wait_vm(named("rml"))]
        L += [f"v_max_f32 v{G(t)}, v{VM+t}, v{mr(t)}" for t in range(3)]
        L += [f"v_sub_f32 v{G(3+t)}, v{VM+t}, v{G(t)}" for t in range(3)] + [f"v_sub_f32 v{G(6+t)}, v{mr(t)}, v{G(t)}" for t in range(3)]
        L += [f"v_exp_f32 v{G(3+t)}, v{G(3+t)}" for t in range(6)]
        L += [f"v_mul_f32 v{G(t)}, v{G(3+t)}, v{VL+t}" for t in range(3)] + [f"v_fma_f32 v{G(t)}, v{G(6+t)}, v{mr(t)+1}, v{G(t)}" for t in range(3)]
        L += [f"v_rcp_f32 v{G(t)}, v{G(t)}" for t in range(3)]
        L += [f"v_mul_f32 v{G(3+t)}, v{G(3+t)}, v{G(t % 3)}" for t in range(6)]
        return L
    def remote(t, pk=False):
        L = []
        for k in range(4):
            z = k * 3 + t; r, u, g = RX(z // 2) + 2 * (z & 1), U(z), G(6 + t)
            L += [(lambda i: lambda: wait_vm(named(("rx", i))))(z // 2)]
            L += [f"v_lshlrev_b32 v{u}, 16, v{r}", f"v_and_b32 v{u+1}, s{sT0}, v{r}", f"v_lshlrev_b32 v{u+2}, 16, v{r+1}", f"v_and_b32 v{u+3}, s{sT0}, v{r+1}"]
            if pk: L += [f"v_pk_mul_f32 v[{u+e}:{u+e+1}], v[{u+e}:{u+e+1}], v[{g&~1}:{(g&~1)+1}] op_sel:[0,{g&1}] op_sel_hi:[1,{g&1}]" for e in (0, 2)]
            else: L += [f"v_mul_f32 v{u+e}, v{u+e}, v{g}" for e in range(4)]
        return L
    def fold(t):
        return [y for z in o["og"][1][2] if z % 3 == t for y in
                [need(("or", 2, z))] + [f"v_fma_f32 v{U(z)+e}, v{UQ(12+z)+e}, v{G(3+t)}, v{U(z)+e}" for e in range(4)]]
    def finish(t, pk=False):
        L = []
        for k in range(4):
            d, u, g = O(k, t), U(k * 3 + t), G(3 + t)
            if pk: L += [f"v_pk_fma_f32 v[{d+e}:{d+e+1}], v[{d+e}:{d+e+1}], v[{g&~1}:{(g&~1)+1}], v[{u+e}:{u+e+1}] op_sel:[0,{g&1},0] op_sel_hi:[1,{g&1},1]" for e in (0, 2)]
            else: L += [f"v_fma_f32 v{d+e}, v{d+e}, v{g}, v{u+e}" for e in range(4)]
            L += [f"v_cvt_pk_bf16_f32 v{d}, v{d}, v{d+1}", f"v_cvt_pk_bf16_f32 v{d+1}, v{d+2}, v{d+3}",
                  (f"ds_write_b64 v{VTW+k}, v[{d}:{d+1}] offset:{t*2048}", dict(fill=("T", t), name=("tw", t), frees=[("O", 2, z) for z in range(6)]))]
        return L
    def outrd(t):
        return [need(("tw", t))] + [(f"ds_read_b128 v[{OUT(2*t+i)}:{OUT(2*t+i)+3}], v{VTR} offset:{t*2048+i*1024}", dict(use=("T", t), private=True, name=("tr", t, i))) for i in range(2)]
    def outst(t):
        L = []
        for i in range(2):
            L += [f"s_add_u32 s{sSO}, s{sXR}, {(2*t+i)*4096}", need(("tr", t, i)),
                  f"buffer_store_dwordx4 v[{OUT(2*t+i)}:{OUT(2*t+i)+3}], v{VXO}, s[{sO}:{sO+3}], s{sSO} offen {o['outfl']}"]
        return L
    def close_epoch(n):
        cyc("a")
        if n == 4:
            A(f"buffer_load_dwordx2 v[{VT+10}:{VT+11}], off, s[{sW}:{sW+3}], s{sFP} offset:8 sc1", name="ack")
        if n == 9:
            wait_vm(named("ack"))
            A(f"v_readfirstlane_b32 s{sT0}, v{VT+10}"); spin("ack", sFP, 8, sNEW, VT + 10, True)
            A(f"v_readfirstlane_b32 s{sT1}, v{VT+11}")
            A(f"s_cmp_eq_u32 s{sT0}, s{sNEW}"); A(f"s_cselect_b32 s{sT1}, s{sT1}, -1")
            A(f"s_cmp_eq_u32 s{sT1}, s{sXCC}"); A(f"s_cselect_b32 s{sXCC}, {1 if o['fast'] else 0}, 0")
        if n == o["flag_epoch"]:
            wait_vm(named("send"))
            A(f"v_mov_b32 v{UQ(11)+3}, s{sNEW}"); A("s_mov_b64 exec, 1")
            fork("flag")
            A(f"buffer_store_dword v{UQ(11)+3}, off, s[{sW}:{sW+3}], s{sFO}", xs=True)
            join("flag")
            A("s_mov_b64 exec, -1")
        if n == o["check_epoch"]:
            recv()
        cyc("b")
        if n < 31:
            A(f"s_waitcnt vmcnt({A.vm_after(lambda c: c.tag.get('fill') == n + 1)}) lgkmcnt(0)"); A("s_barrier")
        cyc("c")
    def waits(M, n, idx):
        out, last = [], -1
        for i, m in enumerate(M):
            m = m if isinstance(m, list) else [m]
            if idx(i) > last:
                last = idx(i); m = [need(("f", n, last))] + m
            out.append(m)
        return out

    cyc("p")
    wait_vm(lambda c: c.tag.get("fill") == 0); A("s_waitcnt lgkmcnt(0)"); A("s_barrier")
    cyc("s")
    tail, carry = [], []
    for n in range(16):
        M = kmfma(n); tm = o["ktail"] if n < 15 else 0
        head = waits(M[:24 - tm], n, lambda i: min((i // 3) | 1, (23 - tm) // 3))
        V = [(x, dict(minslot=len(tail) + 2)) for x in maxes(n - 1)] if n else []
        if n >= 2 and (n - 2) // 2 < o["early"]:
            V = carry + V + early_head((n - 2) // 2) + early_exp(n - 2) if n % 2 == 0 else carry + early_exp(n - 2) + V
        nt = len(tail) / (len(tail) + len(head))
        if tail:
            ns = len(tail) + len(head); w = o["hush0"] / ns
            carry = sched(tail + head, [(kreads(n), [0, 0, 2, 2, 4, 4, 6, 6]), (dmas(n), [1, 3, 5, 7, 10, 13, 16, 19])], V, (w, 1.0), cap=o["kcap"], keep=True)
        else:
            emit(kreads(n)); carry = sched(head, [(dmas(n), 0.1, 0.95)], V, keep=True)
        tail = M[24 - tm:]
        if n == 15:
            stamp()
            last = max([i for i, x in enumerate(carry) if "v_max3" in txt(x)], default=-1)
            emit(carry[:last + 1]); carry = carry[last + 1:]
            emit(maxes(15))
            for swap in ("v_permlane32_swap_b32", "v_permlane16_swap_b32"):
                for t in range(3): A(f"v_mov_b32 v{VT+t}, v{VM+t}")
                for t in range(3): A(f"{swap} v{VM+t}, v{VT+t}")
                for t in range(3): A(f"v_max_f32 v{VM+t}, v{VM+t}, v{VT+t}")
            A(f"ds_write_b128 v{VMW}, v[{VM}:{VM+3}]", fill="M")
            assert not any("v_max3" in txt(x) for x in carry)
            emit(carry)
        close_epoch(n)
    A(f"ds_read_b128 v[{VT}:{VT+3}], v{VMR}", use="M", name="mr")
    emit(vreads(16)); need("mr")()
    for t in range(3): A(f"v_max_f32 v{VM+t}, v{VM+t}, v{VT+t}")
    for t in range(3): A(f"v_mul_f32 v{VM+t}, s{sC}, v{VM+t}")
    for t in range(3): A(f"v_ceil_f32 v{VM+t}, v{VM+t}")
    emit(soft(0))
    late = [x for j in range(o["early"], 8) for x in soft(j)]
    def cvalu(j):
        nonlocal late
        if j >= 7: return []
        k = -(-len(late) // (o["early"] - j)) if j < o["early"] else len(late)
        V = (soft(j + 1) if j + 1 < o["early"] else []) + late[:k]; late = late[k:]
        return V
    def must(V, regs):
        need_, keep, rest = set(regs), [], []
        for x in reversed(V):
            i = Ins(txt(x))
            if i.w & need_: need_ |= i.r; keep.insert(0, x)
            else: rest.insert(0, x)
        return keep, rest
    tail, carry = [], []
    for n in range(16, 31):
        c, i4 = (n - 16) >> 2, n & 3
        M0, M1 = vmfma(n, 0), vmfma(n, 1); off = len(M0) - 12
        tm = o["vtail"] if n < 30 else 0
        groups = o["og"][c >> 1] if c & 1 else []
        if c & 1:
            done = lambda e: groups[e] if 0 <= e < len(groups) else []
            first, second = done(i4 - 2), done(i4 - 1) if i4 == (3 if c == 1 else 2) else []
            MM = M0 + M1
            for z in first + second:
                MM[z + 6] = ([need(("or", c - 1, z | 1))] if z in second and z % 2 == 0 else []) + oadd(c - 1, z) + [MM[z + 6]]
            M0, M1 = MM[:12], MM[12:]
        for u, M in ((0, M0), (1, M1)):
            for k in range(4):
                i = off + 3 * k
                if u == 1 and i >= len(M) - tm: continue
                M[i] = [need(("f", n, 4 * u + k))] + (M[i] if isinstance(M[i], list) else [M[i]])
        R = vreads(n) if n > 16 else []
        D = dmas(n); V0, V1 = [], []
        if c == 0: V0, V1 = cvalu(2 * i4), cvalu(2 * i4 + 1)
        W, OR, LW = [], [], []
        if c & 1:
            W, OR = owrite(c - 1, done(i4)), oread(c - 1, done(i4 - 1))
            if n == 20: LW = lwrite()
            if n == 22: OR = OR + [(f"ds_read_b96 v[{VL}:{VL+2}], v{VMR} offset:1024", dict(use="l"))]
            if n == 23: V0 = lsum() + send_prep()
        if n == 24: V0 = [(txt(x), dict(x[1] if isinstance(x, tuple) else {}, minslot=2)) for x in send()]
        if n == 26: V0 = tail_addrs()
        HM = tail + M0 + M1[:len(M1) - tm]; n0 = len(tail) + len(M0)
        win = [0, 0, 2, 2, 4, 4, 6, 6]
        if n == 24:
            sched(tail, [(R[:8], [0, 0, 1, 2, 3, 3, 4, 5])])
            fork("send")
            V1 = sched(M0, [(R[8:], 0.0, 0.7)], V0, (max(o["hush0"] - len(tail), 0) / 12, 1.0), cap=o["scap"], keep=True)
            carry = sched(M1[:len(M1) - tm], [], V1)
            join("send")
            emit(D)
        elif c == 0:
            if tail: sched(HM[:n0], [(R, win + list(range(8, 16))), (D, [1, 3, 5, 7, 16, 17, 18, 19])], carry + V0, (o["hush0"] / n0, 1.0))
            else: sched(HM[:n0], [(D, [1, 4, 7, 10, 11, 12, 13, 14])], V0)
            carry = sched(HM[n0:], [], V1, keep=True, cap=max(8.0, cost(V1) / (len(HM) - n0) * o["c1share"]))
        else:
            late_r = [14, 14, 15, 15, 18, 18, 19, 19] if W or OR else list(range(8, 16))
            carry = sched(HM, [(R, win + late_r), (D, [1, 3, 5, 7, 9, 13, 17, 21, 22]), (W, [8, 12, 16, 20]), (OR, [10, 10, 11, 11, 13]), (LW, [10, 14, 18])],
                          V0, (o["hush0"] / len(HM), 1.0))
        carry = carry or []
        if c == 0 and i4 < 3:
            now, carry = must(carry, {f"v{P(2*i4+2, t)+e}" for t in range(3) for e in range(4)}); emit(now)
        assert n != 19 or not carry
        tail = M1[len(M1) - tm:]
        if n == 23: stamp()
        if n == 30 and o["prerem"]:
            assert o["check_epoch"] < 30
            A(f"s_mov_b32 s{sT0}, 0xffff0000"); emit(factors() + remote(0, True) + remote(1, True) + remote(2, True))
        close_epoch(n)
    A(f"s_mov_b32 s{sT0}, 0xffff0000")
    emit(vreads(31) + oread(2, o["og"][1][2]))
    order = [(u, k, t) for t in range(3) for u in range(2) for k in range(4)]
    M = waits([vm1(31, *x) for x in order], 31, lambda i: min(i | 1, 7))
    if o["prerem"]:
        sched(M[:10], [], fold(0) + fold(1) + fold(2), (0.5, 1.0)); sched(M[10:18], [], finish(0)); sched(M[18:], [], outrd(0) + finish(1))
    else:
        sched(M[:8], [], factors() + remote(0) + fold(0))
        sched(M[8:16], [], remote(1) + fold(1) + finish(0), (0.0, 1.0))
        sched(M[16:], [], remote(2) + fold(2) + finish(1) + outrd(0), (0.0, 1.0))
    stamp(); cyc("s")
    emit(outst(0)); emit(outrd(1)); emit(finish(2, True)); emit(outst(1)); emit(outrd(2)); emit(outst(2))
    if o["stamps"]:
        stamp(); A("s_waitcnt vmcnt(0)"); stamp()
        A(f"s_lshl_b32 s{sT0}, s{sWAVE}, 6"); A(f"v_add_u32 v8, s{sT0}, v{VLANE}")
        store_stamps(A, sW, st, 8, 4)
    if o["cyc"]:
        cyc("s"); A("s_waitcnt vmcnt(0)"); cyc("s")
        A(f"s_cmp_lg_u32 s{sWAVE}, {o['cycwave']}"); A("s_cbranch_scc1 L_end")
        A("s_lshl_b32 s99, s2, 8"); A("s_mov_b64 exec, 1")
        for i, r in enumerate(cy):
            A(f"v_mov_b32 v8, s{r}"); A(f"buffer_store_dword v8, off, s[{sW}:{sW+3}], s99 offset:{4*i}"); A("s_nop 1")
    A("L_end:"); A("s_endpgm")
    for x in side: A(x, side=True)
    A.guard_lgkm()
    added = A.pad(verbose=kw.get("verbose", False))
    A.check_waits()
    if not o["fast"]:
        for i in A.I:
            if i.tag.get("xs") and i.kind in ("vstore", "vload"): i.text = re.sub(r"( +(nt|sc0|sc1))* *$", "", i.text) + " sc1"
    for label in forks:
        pos = {i.text: k for k, i in enumerate(A.I) if i.label}
        body = A.I[pos[f"L_{label}_near:"] + 1:pos[f"L_{label}_join:"]]
        A(f"L_{label}_far:")
        far = lambda t: re.sub(r"( +(nt|sc0|sc1))* *$", "", t) + " sc1"
        for i in body: A(far(i.text) if i.tag.get("xs") and i.kind in ("vstore", "vload") else i.text)
        A(f"s_branch L_{label}_join")
    A("L_code_end:")
    footer(A)
    print("instructions:", sum(1 for i in A.I if i.kind != "none"), "nop states added:", added, file=sys.stderr)
    return A.text()

def variants(tag, **kw):
    open(f"{tag}.s", "w").write(gen(verbose="-v" in sys.argv, **kw))
    open(f"{tag}_cyc.s", "w").write(gen(cyc="sc", **kw))

if __name__ == "__main__":
    variants("e_v7")
    variants("e_v7_h7", hush0=7, kcap=12.4)
    variants("e_v7_k14", kcap=14)
    variants("e_v7_s1", c1share=1.0)
    variants("e_v7_pre", prerem=True)
    variants("e_v7_x", xmap=True)
```
